```python
import torch

def _softmax(x, axis=-1):
    return torch.softmax(x, dim=axis)
def _gelu(x):
    return torch.nn.functional.gelu(x, approximate="tanh")
def _silu(x):
    return torch.nn.functional.silu(x)
def _sigmoid(x):
    return torch.sigmoid(x)
def _layernorm(x, axis=-1, eps=1e-5):
    m = x.mean(dim=axis, keepdim=True)
    v = x.var(dim=axis, keepdim=True, unbiased=False)
    return (x - m) / torch.sqrt(v + eps)
def _scatter_add(tgt, idx, src, axis=0):
    return tgt.clone().index_add_(axis, idx, src)
def _segment_sum(src, seg, n):
    out = torch.zeros((n,) + src.shape[1:], dtype=src.dtype)
    return out.index_add_(0, seg, src)
def _pad(x, pw):
    flat = tuple(v for pair in reversed(pw) for v in pair)
    return torch.nn.functional.pad(x, flat)

kernel_name = 'concat_heads__sliding_block_cached__sliding_block_cached__decode'

def setup_inputs():

    _w = (lambda a: (lambda t: t.to(torch.bfloat16) if t.is_floating_point() else t)(torch.as_tensor(a)))
    def _A_setup():
        B, Sq, D = 4, 1, 512
        Hq, Hkv, Sk, Dh = 32, 8, 8192, 128
        assert Hq % Hkv == 0, (Hq, Hkv)
        return {
            "x": _w((lambda *s: torch.randn(*s, dtype=torch.bfloat16) * 0.8)(B, Sq, D)),
            "k_cache": _w((lambda *s: torch.randn(*s, dtype=torch.bfloat16) * 1.6)(B, Hkv, Sk, Dh)),
            "v_cache": _w((lambda *s: torch.randn(*s, dtype=torch.bfloat16) * 0.2)(B, Hkv, Sk, Dh)),
            "wq": _w((lambda *s: torch.randn(*s, dtype=torch.bfloat16) * 1.6)(D, Hq * Dh) * (D ** -0.5)),
            "wo": _w((lambda *s: torch.randn(*s, dtype=torch.bfloat16) * 0.2)(Hq * Dh, D) * ((Hq * Dh) ** -0.5)),
        }
    _A_in = _A_setup()

    def _B_setup():
        B, Sq, D = 4, 1, 512
        Hq, Hkv, Sk, Dh = 32, 8, 8192, 128
        assert Hq % Hkv == 0, (Hq, Hkv)
        return {
            "x": _w((lambda *s: torch.randn(*s, dtype=torch.bfloat16) * 0.8)(B, Sq, D)),
            "k_cache": _w((lambda *s: torch.randn(*s, dtype=torch.bfloat16) * 1.6)(B, Hkv, Sk, Dh)),
            "v_cache": _w((lambda *s: torch.randn(*s, dtype=torch.bfloat16) * 0.2)(B, Hkv, Sk, Dh)),
            "wq": _w((lambda *s: torch.randn(*s, dtype=torch.bfloat16) * 1.6)(D, Hq * Dh) * (D ** -0.5)),
            "wo": _w((lambda *s: torch.randn(*s, dtype=torch.bfloat16) * 0.2)(Hq * Dh, D) * ((Hq * Dh) ** -0.5)),
        }
    _B_in = _B_setup()

    return {
        "A_x": _A_in["x"],
        "A_k_cache": _A_in["k_cache"],
        "A_v_cache": _A_in["v_cache"],
        "A_wq": _A_in["wq"],
        "A_wo": _A_in["wo"],
        "B_x": _B_in["x"],
        "B_k_cache": _B_in["k_cache"],
        "B_v_cache": _B_in["v_cache"],
        "B_wq": _B_in["wq"],
        "B_wo": _B_in["wo"],
    }

def reference(A_x, A_k_cache, A_v_cache, A_wq, A_wo, B_x, B_k_cache, B_v_cache, B_wq, B_wo):
    def _A_ref(x, k_cache, v_cache, wq, wo):
        B, Sq, D = x.shape
        Hq, Dh = 32, 128
        Hkv, Sk = k_cache.shape[1], k_cache.shape[2]
        W = min(4096, max(256, Sk // 4))
        rep = Hq // Hkv
        q = (lambda x, *d: x.permute(*d))((x @ wq).reshape(B, Sq, Hq, Dh), 0, 2, 1, 3)
        k = (lambda x, n, axis: torch.repeat_interleave(x, n, dim=axis))(k_cache[:, :, Sk - W:, :], rep, axis=1)
        v = (lambda x, n, axis: torch.repeat_interleave(x, n, dim=axis))(v_cache[:, :, Sk - W:, :], rep, axis=1)
        scores = torch.einsum("bhqd,bhkd->bhqk", q, k) * (Dh ** -0.5)
        p = _softmax(scores, axis=-1)
        o = torch.einsum("bhqk,bhkd->bhqd", p, v)
        return (lambda x, *d: x.permute(*d))(o, 0, 2, 1, 3).reshape(B, Sq, Hq * Dh) @ wo

    def _B_ref(x, k_cache, v_cache, wq, wo):
        B, Sq, D = x.shape
        Hq, Dh = 32, 128
        Hkv, Sk = k_cache.shape[1], k_cache.shape[2]
        W = min(4096, max(256, Sk // 4))
        rep = Hq // Hkv
        q = (lambda x, *d: x.permute(*d))((x @ wq).reshape(B, Sq, Hq, Dh), 0, 2, 1, 3)
        k = (lambda x, n, axis: torch.repeat_interleave(x, n, dim=axis))(k_cache[:, :, Sk - W:, :], rep, axis=1)
        v = (lambda x, n, axis: torch.repeat_interleave(x, n, dim=axis))(v_cache[:, :, Sk - W:, :], rep, axis=1)
        scores = torch.einsum("bhqd,bhkd->bhqk", q, k) * (Dh ** -0.5)
        p = _softmax(scores, axis=-1)
        o = torch.einsum("bhqk,bhkd->bhqd", p, v)
        return (lambda x, *d: x.permute(*d))(o, 0, 2, 1, 3).reshape(B, Sq, Hq * Dh) @ wo

    a = _A_ref(A_x, A_k_cache, A_v_cache, A_wq, A_wo)
    b = _B_ref(B_x, B_k_cache, B_v_cache, B_wq, B_wo)
    return torch.concatenate([a, b], axis=-1)
```

```python
import sys

OUT = "concat_heads__sliding_block_cached__sliding_block_cached__decode.s"

WS_QPART = 0
WS_OPART = 1 << 20
WS_ML = 2 << 20
WS_OUTP = 3 << 20

L = []


def e(s):
    L.append("    " + s)


def lab(s):
    L.append(s + ":")


def vr(a, n=1):
    return f"v{a}" if n == 1 else f"v[{a}:{a+n-1}]"


def kd(name, nvgpr, nsgpr=64):
    acc = (nvgpr + 3) // 4 * 4
    return f""".amdhsa_kernel {name}
  .amdhsa_next_free_vgpr {nvgpr}
  .amdhsa_next_free_sgpr {nsgpr}
  .amdhsa_accum_offset {acc}
  .amdhsa_group_segment_fixed_size 0
  .amdhsa_kernarg_size 104
  .amdhsa_user_sgpr_count 2
  .amdhsa_user_sgpr_kernarg_segment_ptr 1
  .amdhsa_system_sgpr_workgroup_id_x 1
.end_amdhsa_kernel
"""


def pk_fma_bcast(acc, w, x):
    if x % 2 == 0:
        e(f"v_pk_fma_f32 {vr(acc,2)}, {vr(w,2)}, {vr(x,2)}, {vr(acc,2)} op_sel:[0,0,0] op_sel_hi:[1,0,1]")
    else:
        e(f"v_pk_fma_f32 {vr(acc,2)}, {vr(w,2)}, {vr(x-1,2)}, {vr(acc,2)} op_sel:[0,1,0] op_sel_hi:[1,1,1]")


def unpack8(dst, src):
    for k in range(4):
        e(f"v_lshlrev_b32 {vr(dst+2*k)}, 16, {vr(src+k)}")
        e(f"v_and_b32 {vr(dst+2*k+1)}, 0xffff0000, {vr(src+k)}")


def gen_qproj():
    name = "qproj_kernel"
    L.append(f".globl {name}\n.p2align 8\n.type {name},@function")
    lab(name)
    e("s_cmp_ge_u32 s2, 256")
    e("s_cbranch_scc1 L_q_end")
    e("s_load_dwordx2 s[4:5], s[0:1], 0")
    e("s_load_dwordx2 s[6:7], s[0:1], 40")
    e("s_load_dwordx2 s[8:9], s[0:1], 24")
    e("s_load_dwordx2 s[10:11], s[0:1], 64")
    e("s_load_dwordx2 s[12:13], s[0:1], 96")
    e("s_lshr_b32 s14, s2, 7")
    e("s_lshr_b32 s15, s2, 5")
    e("s_and_b32 s15, s15, 3")
    e("s_and_b32 s16, s2, 31")
    e("v_and_b32 v1, 15, v0")
    e("v_lshrrev_b32 v2, 4, v0")
    e("s_lshl_b32 s17, s15, 7")
    e("v_lshlrev_b32 v3, 3, v2")
    e("v_add_u32 v3, s17, v3")
    e("v_lshlrev_b32 v4, 1, v3")
    e("v_lshlrev_b32 v5, 13, v3")
    e("s_lshl_b32 s18, s16, 8")
    e("v_lshlrev_b32 v6, 4, v1")
    e("v_add3_u32 v5, v5, s18, v6")
    e("s_waitcnt lgkmcnt(0)")
    e("s_cmp_eq_u32 s14, 0")
    e("s_cselect_b64 s[4:5], s[4:5], s[6:7]")
    e("s_cselect_b64 s[8:9], s[8:9], s[10:11]")
    OFF = 8
    for i in range(8):
        if i == 0:
            e(f"v_mov_b32 {vr(OFF)}, v5")
        else:
            e(f"v_add_u32 {vr(OFF+i)}, {i*8192}, v5")
    W = 16
    for i in range(8):
        e(f"global_load_dwordx4 {vr(W+4*i,4)}, {vr(OFF+i)}, s[8:9]")
    X = 48
    for b in range(4):
        e(f"global_load_dwordx4 {vr(X+4*b,4)}, v4, s[4:5] offset:{b*1024}")
    XS = 64
    ACC = 96
    for r in range(32):
        e(f"v_mov_b32 {vr(ACC+r)}, 0")
    e("s_waitcnt vmcnt(0)")
    for b in range(4):
        unpack8(XS + 8*b, X + 4*b)
    WF = 128
    for i in range(8):
        unpack8(WF, W + 4*i)
        for b in range(4):
            for k in range(4):
                pk_fma_bcast(ACC + 8*b + 2*k, WF + 2*k, XS + 8*b + i)
    e("v_lshlrev_b32 v7, 11, v2")
    e("v_lshl_add_u32 v7, v1, 5, v7")
    for b in range(4):
        e(f"ds_write_b128 v7, {vr(ACC+8*b,4)} offset:{b*512}")
        e(f"ds_write_b128 v7, {vr(ACC+8*b+4,4)} offset:{b*512+16}")
    e("s_waitcnt lgkmcnt(0)")
    e("s_barrier")
    e("v_lshlrev_b32 v7, 3, v0")
    T = 16
    for r in range(16):
        e(f"ds_read_b64 {vr(T+2*r,2)}, v7 offset:{r*2048}")
    for r in range(1, 16):
        e(f"s_waitcnt lgkmcnt({15-r})")
        e(f"v_pk_add_f32 {vr(T,2)}, {vr(T,2)}, {vr(T+2*r,2)}")
    e("s_lshl_b32 s19, s14, 2")
    e("s_add_u32 s19, s19, s15")
    e("s_lshl_b32 s19, s19, 16")
    e("s_lshl_b32 s20, s16, 9")
    e("s_add_u32 s19, s19, s20")
    e("v_lshrrev_b32 v8, 6, v0")
    e("v_lshlrev_b32 v8, 14, v8")
    e("v_and_b32 v9, 63, v0")
    e("v_lshlrev_b32 v9, 3, v9")
    e("v_add3_u32 v8, v8, v9, s19")
    e(f"global_store_dwordx2 v8, {vr(T,2)}, s[12:13]")
    lab("L_q_end")
    e("s_endpgm")
    return kd(name, 136, 32)


def dpp_max(dst, src, ctrl):
    e(f"v_max_f32_dpp {vr(dst)}, {vr(src)}, {vr(src)} {ctrl} row_mask:0xf bank_mask:0xf")


def dpp_add(dst, src, ctrl):
    e(f"v_add_f32_dpp {vr(dst)}, {vr(src)}, {vr(src)} {ctrl} row_mask:0xf bank_mask:0xf")


DPP_STEPS = ["quad_perm:[1,0,3,2]", "quad_perm:[2,3,0,1]", "row_half_mirror", "row_mirror"]


def gen_attn():
    name = "attn_kernel"
    L.append(f".globl {name}\n.p2align 8\n.type {name},@function")
    lab(name)
    e("s_cmp_ge_u32 s2, 512")
    e("s_cbranch_scc1 L_a_end")
    e("s_load_dwordx4 s[4:7], s[0:1], 8")
    e("s_load_dwordx4 s[8:11], s[0:1], 48")
    e("s_load_dwordx2 s[12:13], s[0:1], 96")
    e("s_lshr_b32 s14, s2, 8")
    e("s_lshr_b32 s15, s2, 6")
    e("s_and_b32 s15, s15, 3")
    e("s_lshr_b32 s16, s2, 3")
    e("s_and_b32 s16, s16, 7")
    e("s_and_b32 s17, s2, 7")
    e("s_lshl_b32 s18, s15, 3")
    e("s_add_u32 s18, s18, s16")
    e("s_lshl_b32 s18, s18, 13")
    e("s_lshl_b32 s19, s17, 8")
    e("s_add_u32 s18, s18, s19")
    e("s_add_u32 s18, s18, 6144")
    e("s_lshl_b32 s18, s18, 8")
    e("s_lshl_b32 s20, s14, 4")
    e("s_add_u32 s20, s20, s15")
    e("s_lshl_b32 s20, s20, 14")
    e("s_lshl_b32 s21, s16, 11")
    e("s_add_u32 s20, s20, s21")
    e("v_lshrrev_b32 v1, 6, v0")
    e("v_and_b32 v2, 63, v0")
    e("v_lshlrev_b32 v3, 3, v0")
    e("v_add_u32 v3, s20, v3")
    e("v_lshlrev_b32 v4, 14, v1")
    e("v_and_b32 v5, 15, v2")
    e("v_lshlrev_b32 v5, 8, v5")
    e("v_lshrrev_b32 v6, 4, v2")
    e("v_lshlrev_b32 v7, 4, v6")
    e("v_add3_u32 v5, v5, v7, v4")
    e("v_lshl_add_u32 v7, v2, 4, v4")
    e("s_waitcnt lgkmcnt(0)")
    e("s_cmp_eq_u32 s14, 0")
    e("s_cselect_b64 s[4:5], s[4:5], s[8:9]")
    e("s_cselect_b64 s[6:7], s[6:7], s[10:11]")
    e("s_add_u32 s4, s4, s18")
    e("s_addc_u32 s5, s5, 0")
    e("s_add_u32 s6, s6, s18")
    e("s_addc_u32 s7, s7, 0")
    QP = 160
    e("v_add_u32 v8, 0x10000, v3")
    e("v_add_u32 v9, 0x20000, v3")
    e("v_add_u32 v10, 0x30000, v3")
    e(f"global_load_dwordx2 {vr(QP,2)}, v3, s[12:13]")
    e(f"global_load_dwordx2 {vr(QP+2,2)}, v8, s[12:13]")
    e(f"global_load_dwordx2 {vr(QP+4,2)}, v9, s[12:13]")
    e(f"global_load_dwordx2 {vr(QP+6,2)}, v10, s[12:13]")
    KF = 32
    VF = 96
    e("v_add_u32 v8, 4096, v5")
    e("v_add_u32 v9, 8192, v5")
    e("v_add_u32 v10, 12288, v5")
    koff = [5, 8, 9, 10]
    for t in range(4):
        for s in range(4):
            e(f"global_load_dwordx4 {vr(KF+16*t+4*s,4)}, {vr(koff[t])}, s[4:5] offset:{s*64}")
    e("v_add_u32 v11, 4096, v7")
    e("v_add_u32 v12, 8192, v7")
    e("v_add_u32 v13, 12288, v7")
    voff = [7, 11, 12, 13]
    for u in range(16):
        e(f"global_load_dwordx4 {vr(VF+4*u,4)}, {vr(voff[u//4])}, s[6:7] offset:{(u%4)*1024}")
    e("s_waitcnt vmcnt(32)")
    e(f"v_pk_add_f32 {vr(QP,2)}, {vr(QP,2)}, {vr(QP+2,2)}")
    e(f"v_pk_add_f32 {vr(QP+4,2)}, {vr(QP+4,2)}, {vr(QP+6,2)}")
    e(f"v_pk_add_f32 {vr(QP,2)}, {vr(QP,2)}, {vr(QP+4,2)}")
    e(f"v_cvt_pk_bf16_f32 {vr(QP)}, {vr(QP)}, {vr(QP+1)}")
    e("v_lshlrev_b32 v8, 2, v0")
    e(f"ds_write_b32 v8, {vr(QP)}")
    e("s_waitcnt lgkmcnt(0)")
    e("s_barrier")
    QF = 16
    e("v_and_b32 v8, 3, v2")
    e("v_lshlrev_b32 v8, 8, v8")
    e("v_lshl_add_u32 v8, v6, 4, v8")
    for s in range(4):
        e(f"ds_read_b128 {vr(QF+4*s,4)}, v8 offset:{s*64}")
    D = 160
    for r in range(16):
        e(f"v_mov_b32 {vr(D+r)}, 0")
    e("s_waitcnt lgkmcnt(0)")
    for t in range(4):
        e(f"s_waitcnt vmcnt({28-4*t})")
        for s in range(4):
            e(f"v_mfma_f32_16x16x32_bf16 {vr(D+4*t,4)}, {vr(QF+4*s,4)}, {vr(KF+16*t+4*s,4)}, {vr(D+4*t,4)}")
    e("s_mov_b32 s22, 0xffff0000")
    e("s_mov_b32 s23, 0")
    e("s_mov_b32 s24, 0")
    e("s_mov_b32 s25, 0x0000ffff")
    e("s_mov_b32 s26, 0")
    e("s_mov_b32 s27, 0xffff0000")
    e("s_nop 7")
    e("s_nop 3")
    S = 176
    for i in range(4):
        e(f"v_cndmask_b32 {vr(S+i)}, {vr(D+i)}, {vr(D+4+i)}, s[22:23]")
    for i in range(4):
        e(f"v_cndmask_b32 {vr(S+i)}, {vr(S+i)}, {vr(D+8+i)}, s[24:25]")
    for i in range(4):
        e(f"v_cndmask_b32 {vr(S+i)}, {vr(S+i)}, {vr(D+12+i)}, s[26:27]")
    e("s_mov_b32 s28, 0x3e0293ee")
    for i in range(4):
        e(f"v_mul_f32 {vr(S+i)}, s28, {vr(S+i)}")
    M = 180
    for i in range(4):
        e(f"v_mov_b32 {vr(M+i)}, {vr(S+i)}")
    for st in DPP_STEPS:
        e("s_nop 1")
        for i in range(4):
            dpp_max(M+i, M+i, st)
    e("s_nop 1")
    for i in range(4):
        e(f"v_readlane_b32 s{32+4*i}, {vr(M+i)}, 0")
        e(f"v_readlane_b32 s{33+4*i}, {vr(M+i)}, 16")
        e(f"v_readlane_b32 s{34+4*i}, {vr(M+i)}, 32")
        e(f"v_readlane_b32 s{35+4*i}, {vr(M+i)}, 48")
    e("s_nop 1")
    for i in range(4):
        e(f"v_mov_b32 {vr(M+i)}, s{32+4*i}")
    for k in range(1, 4):
        for i in range(4):
            e(f"v_max_f32 {vr(M+i)}, s{32+4*i+k}, {vr(M+i)}")
    P = 184
    for i in range(4):
        e(f"v_sub_f32 {vr(P+i)}, {vr(S+i)}, {vr(M+i)}")
    for i in range(4):
        e(f"v_exp_f32 {vr(P+i)}, {vr(P+i)}")
    e("v_lshlrev_b32 v8, 10, v1")
    e("v_lshl_add_u32 v9, v2, 4, v8")
    e("s_nop 0")
    e(f"ds_write_b128 v9, {vr(P,4)} offset:1024")
    SUM = 188
    for i in range(4):
        e(f"v_mov_b32 {vr(SUM+i)}, {vr(P+i)}")
    for st in DPP_STEPS:
        e("s_nop 1")
        for i in range(4):
            dpp_add(SUM+i, SUM+i, st)
    e("s_nop 1")
    for i in range(4):
        e(f"v_readlane_b32 s{32+4*i}, {vr(SUM+i)}, 0")
        e(f"v_readlane_b32 s{33+4*i}, {vr(SUM+i)}, 16")
        e(f"v_readlane_b32 s{34+4*i}, {vr(SUM+i)}, 32")
        e(f"v_readlane_b32 s{35+4*i}, {vr(SUM+i)}, 48")
    e("s_nop 1")
    for i in range(4):
        e(f"v_mov_b32 {vr(SUM+i)}, s{32+4*i}")
    for k in range(1, 4):
        for i in range(4):
            e(f"v_add_f32 {vr(SUM+i)}, s{32+4*i+k}, {vr(SUM+i)}")
    e("v_lshl_add_u32 v9, v6, 4, v8")
    e("s_waitcnt lgkmcnt(0)")
    PQ = KF
    for u in range(16):
        e(f"ds_read_b128 {vr(PQ+4*u,4)}, v9 offset:{1024+u*64}")
    ACC = 192
    for r in range(32):
        e(f"v_mov_b32 {vr(ACC+r)}, 0")
    XF = 224
    for u in range(16):
        e(f"s_waitcnt vmcnt({15-u}) lgkmcnt({15-u})")
        unpack8(XF, VF+4*u)
        for h in range(4):
            for k in range(4):
                pk_fma_bcast(ACC+8*h+2*k, XF+2*k, PQ+4*u+h)
    e("v_lshlrev_b32 v8, 5, v1")
    e(f"ds_write_b128 v8, {vr(M,4)} offset:5120")
    e(f"ds_write_b128 v8, {vr(SUM,4)} offset:5136")
    e("s_waitcnt lgkmcnt(0)")
    e("s_barrier")
    AM = 32
    e("v_mov_b32 v9, 0")
    for w in range(4):
        e(f"ds_read_b128 {vr(AM+8*w,4)}, v9 offset:{5120+32*w}")
        e(f"ds_read_b128 {vr(AM+8*w+4,4)}, v9 offset:{5136+32*w}")
    e("s_waitcnt lgkmcnt(0)")
    GM = 64
    for i in range(4):
        e(f"v_max_f32 {vr(GM+i)}, {vr(AM+i)}, {vr(AM+8+i)}")
        e(f"v_max3_f32 {vr(GM+i)}, {vr(GM+i)}, {vr(AM+16+i)}, {vr(AM+24+i)}")
    GL = 68
    F = 72
    for i in range(4):
        e(f"v_sub_f32 {vr(F+i)}, {vr(M+i)}, {vr(GM+i)}")
    for i in range(4):
        e(f"v_exp_f32 {vr(F+i)}, {vr(F+i)}")
    for w in range(4):
        for i in range(4):
            e(f"v_sub_f32 {vr(AM+8*w+i)}, {vr(AM+8*w+i)}, {vr(GM+i)}")
        for i in range(4):
            e(f"v_exp_f32 {vr(AM+8*w+i)}, {vr(AM+8*w+i)}")
    e("s_nop 0")
    for i in range(4):
        e(f"v_mul_f32 {vr(GL+i)}, {vr(AM+i)}, {vr(AM+4+i)}")
    for w in range(1, 4):
        for i in range(4):
            e(f"v_fmac_f32 {vr(GL+i)}, {vr(AM+8*w+i)}, {vr(AM+8*w+4+i)}")
    for h in range(4):
        for k in range(4):
            e(f"v_pk_mul_f32 {vr(ACC+8*h+2*k,2)}, {vr(ACC+8*h+2*k,2)}, {vr(F+(h//2)*2,2)} " +
              ("op_sel:[0,0] op_sel_hi:[1,0]" if h % 2 == 0 else "op_sel:[0,1] op_sel_hi:[1,1]"))
    e("v_lshrrev_b32 v8, 4, v0")
    e("v_lshlrev_b32 v8, 11, v8")
    e("v_and_b32 v9, 15, v0")
    e("v_lshl_add_u32 v8, v9, 5, v8")
    for h in range(4):
        e(f"ds_write_b128 v8, {vr(ACC+8*h,4)} offset:{8192+h*512}")
        e(f"ds_write_b128 v8, {vr(ACC+8*h+4,4)} offset:{8192+h*512+16}")
    e("s_waitcnt lgkmcnt(0)")
    e("s_barrier")
    e("v_lshlrev_b32 v8, 3, v0")
    T = 96
    for r in range(16):
        e(f"ds_read_b64 {vr(T+2*r,2)}, v8 offset:{8192+r*2048}")
    for r in range(1, 16):
        e(f"s_waitcnt lgkmcnt({15-r})")
        e(f"v_pk_add_f32 {vr(T,2)}, {vr(T,2)}, {vr(T+2*r,2)}")
    e("s_lshl_b32 s19, s14, 2")
    e("s_add_u32 s19, s19, s15")
    e("s_lshl_b32 s19, s19, 5")
    e("s_lshl_b32 s20, s16, 2")
    e("s_add_u32 s19, s19, s20")
    e("s_lshl_b32 s21, s19, 12")
    e("s_lshl_b32 s20, s17, 9")
    e("s_add_u32 s21, s21, s20")
    e("s_add_u32 s21, s21, %d" % WS_OPART)
    e("v_lshrrev_b32 v8, 6, v0")
    e("v_lshlrev_b32 v8, 12, v8")
    e("v_and_b32 v9, 63, v0")
    e("v_lshlrev_b32 v9, 3, v9")
    e("v_add3_u32 v8, v8, v9, s21")
    e(f"global_store_dwordx2 v8, {vr(T,2)}, s[12:13]")
    e("s_lshl_b32 s21, s19, 6")
    e("s_lshl_b32 s20, s17, 3")
    e("s_add_u32 s21, s21, s20")
    e("s_add_u32 s21, s21, %d" % WS_ML)
    e("v_cmp_eq_u32 vcc, 1, v0")
    e("s_nop 1")
    e(f"v_cndmask_b32 v10, {vr(GM)}, {vr(GM+1)}, vcc")
    e(f"v_cndmask_b32 v11, {vr(GL)}, {vr(GL+1)}, vcc")
    e("v_cmp_eq_u32 vcc, 2, v0")
    e("s_nop 1")
    e(f"v_cndmask_b32 v10, v10, {vr(GM+2)}, vcc")
    e(f"v_cndmask_b32 v11, v11, {vr(GL+2)}, vcc")
    e("v_cmp_eq_u32 vcc, 3, v0")
    e("s_nop 1")
    e(f"v_cndmask_b32 v10, v10, {vr(GM+3)}, vcc")
    e(f"v_cndmask_b32 v11, v11, {vr(GL+3)}, vcc")
    e("v_lshlrev_b32 v8, 6, v0")
    e("v_add_u32 v8, s21, v8")
    e("v_cmp_gt_u32 vcc, 4, v0")
    e("s_and_saveexec_b64 s[30:31], vcc")
    e("s_cbranch_execz L_a_end")
    e("global_store_dwordx2 v8, v[10:11], s[12:13]")
    lab("L_a_end")
    e("s_endpgm")
    return kd(name, 232, 64)


def gen_oproj():
    name = "oproj_kernel"
    L.append(f".globl {name}\n.p2align 8\n.type {name},@function")
    lab(name)
    e("s_cmp_ge_u32 s2, 256")
    e("s_cbranch_scc1 L_o_end")
    e("s_load_dwordx2 s[4:5], s[0:1], 32")
    e("s_load_dwordx2 s[6:7], s[0:1], 72")
    e("s_load_dwordx2 s[8:9], s[0:1], 80")
    e("s_load_dwordx2 s[10:11], s[0:1], 88")
    e("s_load_dwordx2 s[12:13], s[0:1], 96")
    e("s_lshr_b32 s14, s2, 7")
    e("s_lshr_b32 s15, s2, 3")
    e("s_and_b32 s15, s15, 15")
    e("s_and_b32 s16, s2, 7")
    e("v_and_b32 v1, 7, v0")
    e("v_lshrrev_b32 v2, 3, v0")
    e("s_lshl_b32 s17, s15, 8")
    e("v_lshl_add_u32 v3, v2, 3, s17")
    e("v_lshlrev_b32 v3, 10, v3")
    e("s_lshl_b32 s18, s16, 7")
    e("v_lshlrev_b32 v4, 4, v1")
    e("v_add3_u32 v3, v3, s18, v4")
    e("v_add_u32 v4, 4096, v3")
    e("s_waitcnt lgkmcnt(0)")
    e("s_cmp_eq_u32 s14, 0")
    e("s_cselect_b64 s[4:5], s[4:5], s[6:7]")
    e("v_lshrrev_b32 v5, 6, v0")
    e("v_and_b32 v6, 63, v0")
    e("v_lshrrev_b32 v7, 5, v6")
    e("s_lshl_b32 s19, s14, 2")
    e("v_add_u32 v8, s19, v5")
    e("v_lshlrev_b32 v8, 5, v8")
    e("s_lshl_b32 s20, s15, 1")
    e("v_add3_u32 v8, v8, s20, v7")
    e("v_lshlrev_b32 v9, 6, v8")
    e("v_add_u32 v9, %d, v9" % WS_ML)
    e("v_lshlrev_b32 v10, 12, v8")
    e("v_and_b32 v11, 31, v6")
    e("v_lshl_add_u32 v10, v11, 4, v10")
    e("v_add_u32 v10, %d, v10" % WS_OPART)
    ML = 16
    for k in range(4):
        e(f"global_load_dwordx4 {vr(ML+4*k,4)}, v9, s[12:13] offset:{16*k}")
    OP = 32
    for sp in range(8):
        e(f"global_load_dwordx4 {vr(OP+4*sp,4)}, v10, s[12:13] offset:{512*sp}")
    W = 64
    for i in range(8):
        e(f"global_load_dwordx4 {vr(W+4*i,4)}, {'v3' if i < 4 else 'v4'}, s[4:5] offset:{(i%4)*1024}")
    e("s_waitcnt vmcnt(8)")
    e(f"v_max_f32 v12, {vr(ML)}, {vr(ML+2)}")
    for sp in range(2, 8, 2):
        e(f"v_max3_f32 v12, v12, {vr(ML+2*sp)}, {vr(ML+2*sp+2)}")
    for sp in range(8):
        e(f"v_sub_f32 {vr(ML+2*sp)}, {vr(ML+2*sp)}, v12")
    for sp in range(8):
        e(f"v_exp_f32 {vr(ML+2*sp)}, {vr(ML+2*sp)}")
    e("s_nop 0")
    e(f"v_mul_f32 v13, {vr(ML)}, {vr(ML+1)}")
    for sp in range(1, 8):
        e(f"v_fmac_f32 v13, {vr(ML+2*sp)}, {vr(ML+2*sp+1)}")
    e("v_rcp_f32 v13, v13")
    for k in range(4):
        e(f"v_mul_f32 {vr(OP+k)}, {vr(OP+k)}, {vr(ML)}")
    for sp in range(1, 8):
        for k in range(4):
            e(f"v_fmac_f32 {vr(OP+k)}, {vr(OP+4*sp+k)}, {vr(ML+2*sp)}")
    for k in range(4):
        e(f"v_mul_f32 {vr(OP+k)}, {vr(OP+k)}, v13")
    e(f"v_cvt_pk_bf16_f32 v14, {vr(OP)}, {vr(OP+1)}")
    e(f"v_cvt_pk_bf16_f32 v15, {vr(OP+2)}, {vr(OP+3)}")
    e(f"v_lshlrev_b32 {vr(OP)}, 16, v14")
    e(f"v_and_b32 {vr(OP+1)}, 0xffff0000, v14")
    e(f"v_lshlrev_b32 {vr(OP+2)}, 16, v15")
    e(f"v_and_b32 {vr(OP+3)}, 0xffff0000, v15")
    e("v_lshlrev_b32 v11, 4, v0")
    e(f"ds_write_b128 v11, {vr(OP,4)}")
    e("s_waitcnt lgkmcnt(0)")
    e("s_barrier")
    XS = 96
    e("v_lshlrev_b32 v11, 5, v2")
    for b in range(4):
        e(f"ds_read_b128 {vr(XS+8*b,4)}, v11 offset:{b*1024}")
        e(f"ds_read_b128 {vr(XS+8*b+4,4)}, v11 offset:{b*1024+16}")
    ACC = 128
    for r in range(32):
        e(f"v_mov_b32 {vr(ACC+r)}, 0")
    e("s_waitcnt lgkmcnt(0)")
    WF = 160
    for i in range(8):
        e(f"s_waitcnt vmcnt({7-i})")
        unpack8(WF, W+4*i)
        for b in range(4):
            for k in range(4):
                pk_fma_bcast(ACC+8*b+2*k, WF+2*k, XS+8*b+i)
    e("v_lshlrev_b32 v11, 10, v2")
    e("v_lshl_add_u32 v11, v1, 5, v11")
    for b in range(4):
        e(f"ds_write_b128 v11, {vr(ACC+8*b,4)} offset:{4096+b*256}")
        e(f"ds_write_b128 v11, {vr(ACC+8*b+4,4)} offset:{4096+b*256+16}")
    e("s_waitcnt lgkmcnt(0)")
    e("s_barrier")
    e("v_lshlrev_b32 v11, 2, v0")
    T = 16
    for r in range(32):
        e(f"ds_read_b32 {vr(T+r)}, v11 offset:{4096+r*1024}")
    for r in range(1, 32):
        e(f"s_waitcnt lgkmcnt({min(15,31-r)})")
        e(f"v_add_f32 {vr(T)}, {vr(T)}, {vr(T+r)}")
    e("s_lshl_b32 s19, s14, 4")
    e("s_add_u32 s19, s19, s15")
    e("s_lshl_b32 s19, s19, 13")
    e("s_lshl_b32 s20, s16, 8")
    e("s_add_u32 s19, s19, s20")
    e("s_add_u32 s19, s19, %d" % WS_OUTP)
    e("v_lshlrev_b32 v8, 11, v5")
    e("v_lshl_add_u32 v8, v6, 2, v8")
    e("v_add_u32 v9, s19, v8")
    e(f"global_store_dword v9, {vr(T)}, s[12:13] sc1")
    e("s_waitcnt vmcnt(0)")
    e("s_barrier")
    e("s_lshl_b32 s21, s14, 3")
    e("s_add_u32 s21, s21, s16")
    e("s_lshl_b32 s21, s21, 2")
    e("v_mov_b32 v10, s21")
    e("v_mov_b32 v11, 1")
    e("v_cmp_eq_u32 vcc, 0, v0")
    e("s_and_saveexec_b64 s[30:31], vcc")
    e("global_atomic_add v12, v10, v11, s[10:11] sc0 sc1")
    e("v_mov_b32 v13, 0")
    e("s_waitcnt vmcnt(0)")
    e("ds_write_b32 v13, v12")
    e("s_mov_b64 exec, s[30:31]")
    e("s_waitcnt lgkmcnt(0)")
    e("s_barrier")
    e("v_mov_b32 v13, 0")
    e("ds_read_b32 v12, v13")
    e("s_waitcnt lgkmcnt(0)")
    e("v_readfirstlane_b32 s22, v12")
    e("s_nop 3")
    e("s_cmp_lg_u32 s22, 15")
    e("s_cbranch_scc1 L_o_end")
    e("s_lshl_b32 s19, s14, 17")
    e("s_add_u32 s19, s19, s20")
    e("s_add_u32 s19, s19, %d" % WS_OUTP)
    e("v_add_u32 v9, s19, v8")
    e("v_add_u32 v10, 0x8000, v9")
    e("v_add_u32 v11, 0x10000, v9")
    e("v_add_u32 v12, 0x18000, v9")
    bases = ["v9", "v10", "v11", "v12"]
    for r in range(16):
        off = (r % 4) * 8192
        if off < 4096:
            e(f"global_load_dword {vr(T+r)}, {bases[r//4]}, s[12:13] offset:{off} sc1")
        else:
            e(f"v_add_u32 v13, {off}, {bases[r//4]}")
            e(f"global_load_dword {vr(T+r)}, v13, s[12:13] sc1")
    for r in range(1, 16):
        e(f"s_waitcnt vmcnt({15-r})")
        e(f"v_add_f32 {vr(T)}, {vr(T)}, {vr(T+r)}")
    e(f"v_cvt_pk_bf16_f32 {vr(T)}, {vr(T)}, {vr(T)}")
    e("s_lshl_b32 s19, s14, 10")
    e("s_lshl_b32 s20, s16, 7")
    e("s_add_u32 s19, s19, s20")
    e("v_lshlrev_b32 v9, 11, v5")
    e("v_lshl_add_u32 v9, v6, 1, v9")
    e("v_add_u32 v9, s19, v9")
    e(f"global_store_short v9, {vr(T)}, s[8:9]")
    lab("L_o_end")
    e("s_endpgm")
    return kd(name, 168, 40)


HEADER = """; @launch kernel=qproj_kernel grid=(256,1,1) block=(256,1,1) lds=32768
; @launch kernel=attn_kernel grid=(512,1,1) block=(256,1,1) lds=40960
; @launch kernel=oproj_kernel grid=(256,1,1) block=(256,1,1) lds=36864
.amdgcn_target "amdgcn-amd-amdhsa--gfx950"
.text
"""


def main():
    kds = []
    kds.append(gen_qproj())
    kds.append(gen_attn())
    kds.append(gen_oproj())
    txt = HEADER + "\n".join(L) + "\n" + '.section .rodata,"a"\n' + "".join(".p2align 6\n" + k for k in kds)
    open(OUT, "w").write(txt)


if __name__ == "__main__":
    main()
```

```python
import sys

OUT = "concat_heads__sliding_block_cached__sliding_block_cached__decode.s"

WS_QPART = 0
WS_OPART = 1 << 20
WS_ML = 2 << 20
WS_OUTP = 3 << 20

L = []


def e(s):
    L.append("    " + s)


def lab(s):
    L.append(s + ":")


def vr(a, n=1):
    return f"v{a}" if n == 1 else f"v[{a}:{a+n-1}]"


def kd(name, nvgpr, nsgpr=64):
    acc = (nvgpr + 3) // 4 * 4
    return f""".amdhsa_kernel {name}
  .amdhsa_next_free_vgpr {nvgpr}
  .amdhsa_next_free_sgpr {nsgpr}
  .amdhsa_accum_offset {acc}
  .amdhsa_group_segment_fixed_size 0
  .amdhsa_kernarg_size 104
  .amdhsa_user_sgpr_count 2
  .amdhsa_user_sgpr_kernarg_segment_ptr 1
  .amdhsa_system_sgpr_workgroup_id_x 1
.end_amdhsa_kernel
"""


def pk_fma_bcast(acc, w, x):
    if x % 2 == 0:
        e(f"v_pk_fma_f32 {vr(acc,2)}, {vr(w,2)}, {vr(x,2)}, {vr(acc,2)} op_sel:[0,0,0] op_sel_hi:[1,0,1]")
    else:
        e(f"v_pk_fma_f32 {vr(acc,2)}, {vr(w,2)}, {vr(x-1,2)}, {vr(acc,2)} op_sel:[0,1,0] op_sel_hi:[1,1,1]")


def unpack8(dst, src):
    for k in range(4):
        e(f"v_lshlrev_b32 {vr(dst+2*k)}, 16, {vr(src+k)}")
        e(f"v_and_b32 {vr(dst+2*k+1)}, 0xffff0000, {vr(src+k)}")


def gen_qproj():
    name = "qproj_kernel"
    L.append(f".globl {name}\n.p2align 8\n.type {name},@function")
    lab(name)
    e("s_cmp_ge_u32 s2, 256")
    e("s_cbranch_scc1 L_q_end")
    e("s_load_dwordx2 s[4:5], s[0:1], 0")
    e("s_load_dwordx2 s[6:7], s[0:1], 40")
    e("s_load_dwordx2 s[8:9], s[0:1], 24")
    e("s_load_dwordx2 s[10:11], s[0:1], 64")
    e("s_load_dwordx2 s[12:13], s[0:1], 96")
    e("s_lshr_b32 s14, s2, 7")
    e("s_lshr_b32 s15, s2, 5")
    e("s_and_b32 s15, s15, 3")
    e("s_and_b32 s16, s2, 31")
    e("v_and_b32 v1, 15, v0")
    e("v_lshrrev_b32 v2, 4, v0")
    e("s_lshl_b32 s17, s15, 7")
    e("v_lshlrev_b32 v3, 3, v2")
    e("v_add_u32 v3, s17, v3")
    e("v_lshlrev_b32 v4, 1, v3")
    e("v_lshlrev_b32 v5, 13, v3")
    e("s_lshl_b32 s18, s16, 8")
    e("v_lshlrev_b32 v6, 4, v1")
    e("v_add3_u32 v5, v5, s18, v6")
    e("s_waitcnt lgkmcnt(0)")
    e("s_cmp_eq_u32 s14, 0")
    e("s_cselect_b64 s[4:5], s[4:5], s[6:7]")
    e("s_cselect_b64 s[8:9], s[8:9], s[10:11]")
    OFF = 8
    for i in range(8):
        if i == 0:
            e(f"v_mov_b32 {vr(OFF)}, v5")
        else:
            e(f"v_add_u32 {vr(OFF+i)}, {i*8192}, v5")
    W = 16
    for i in range(8):
        e(f"global_load_dwordx4 {vr(W+4*i,4)}, {vr(OFF+i)}, s[8:9] nt")
    X = 48
    for b in range(4):
        e(f"global_load_dwordx4 {vr(X+4*b,4)}, v4, s[4:5] offset:{b*1024}")
    XS = 64
    ACC = 96
    for r in range(32):
        e(f"v_mov_b32 {vr(ACC+r)}, 0")
    e("s_waitcnt vmcnt(0)")
    for b in range(4):
        unpack8(XS + 8*b, X + 4*b)
    WF = 128
    for i in range(8):
        unpack8(WF, W + 4*i)
        for b in range(4):
            for k in range(4):
                pk_fma_bcast(ACC + 8*b + 2*k, WF + 2*k, XS + 8*b + i)
    e("v_lshlrev_b32 v7, 11, v2")
    e("v_lshl_add_u32 v7, v1, 5, v7")
    for b in range(4):
        e(f"ds_write_b128 v7, {vr(ACC+8*b,4)} offset:{b*512}")
        e(f"ds_write_b128 v7, {vr(ACC+8*b+4,4)} offset:{b*512+16}")
    e("s_waitcnt lgkmcnt(0)")
    e("s_barrier")
    e("v_lshlrev_b32 v7, 3, v0")
    T = 16
    for r in range(16):
        e(f"ds_read_b64 {vr(T+2*r,2)}, v7 offset:{r*2048}")
    for r in range(1, 16):
        e(f"s_waitcnt lgkmcnt({15-r})")
        e(f"v_pk_add_f32 {vr(T,2)}, {vr(T,2)}, {vr(T+2*r,2)}")
    e("s_lshl_b32 s19, s14, 2")
    e("s_add_u32 s19, s19, s15")
    e("s_lshl_b32 s19, s19, 16")
    e("s_lshl_b32 s20, s16, 9")
    e("s_add_u32 s19, s19, s20")
    e("v_lshrrev_b32 v8, 6, v0")
    e("v_lshlrev_b32 v8, 14, v8")
    e("v_and_b32 v9, 63, v0")
    e("v_lshlrev_b32 v9, 3, v9")
    e("v_add3_u32 v8, v8, v9, s19")
    e(f"global_store_dwordx2 v8, {vr(T,2)}, s[12:13]")
    lab("L_q_end")
    e("s_endpgm")
    return kd(name, 136, 32)


def dpp_max(dst, src, ctrl):
    e(f"v_max_f32_dpp {vr(dst)}, {vr(src)}, {vr(src)} {ctrl} row_mask:0xf bank_mask:0xf")


def dpp_add(dst, src, ctrl):
    e(f"v_add_f32_dpp {vr(dst)}, {vr(src)}, {vr(src)} {ctrl} row_mask:0xf bank_mask:0xf")


DPP_STEPS = ["quad_perm:[1,0,3,2]", "quad_perm:[2,3,0,1]", "row_half_mirror", "row_mirror"]


def gen_attn():
    name = "attn_kernel"
    L.append(f".globl {name}\n.p2align 8\n.type {name},@function")
    lab(name)
    e("s_cmp_ge_u32 s2, 512")
    e("s_cbranch_scc1 L_a_end")
    e("s_load_dwordx4 s[4:7], s[0:1], 8")
    e("s_load_dwordx4 s[8:11], s[0:1], 48")
    e("s_load_dwordx2 s[12:13], s[0:1], 96")
    e("s_lshr_b32 s14, s2, 8")
    e("s_lshr_b32 s15, s2, 6")
    e("s_and_b32 s15, s15, 3")
    e("s_lshr_b32 s16, s2, 3")
    e("s_and_b32 s16, s16, 7")
    e("s_and_b32 s17, s2, 7")
    e("s_lshl_b32 s18, s15, 3")
    e("s_add_u32 s18, s18, s16")
    e("s_lshl_b32 s18, s18, 13")
    e("s_lshl_b32 s19, s17, 8")
    e("s_add_u32 s18, s18, s19")
    e("s_add_u32 s18, s18, 6144")
    e("s_lshl_b32 s18, s18, 8")
    e("s_lshl_b32 s20, s14, 4")
    e("s_add_u32 s20, s20, s15")
    e("s_lshl_b32 s20, s20, 14")
    e("s_lshl_b32 s21, s16, 11")
    e("s_add_u32 s20, s20, s21")
    e("v_lshrrev_b32 v1, 6, v0")
    e("v_and_b32 v2, 63, v0")
    e("v_lshlrev_b32 v3, 3, v0")
    e("v_add_u32 v3, s20, v3")
    e("v_lshlrev_b32 v4, 14, v1")
    e("v_and_b32 v5, 15, v2")
    e("v_lshlrev_b32 v5, 8, v5")
    e("v_lshrrev_b32 v6, 4, v2")
    e("v_lshlrev_b32 v7, 4, v6")
    e("v_add3_u32 v5, v5, v7, v4")
    e("v_lshl_add_u32 v7, v2, 4, v4")
    e("s_waitcnt lgkmcnt(0)")
    e("s_cmp_eq_u32 s14, 0")
    e("s_cselect_b64 s[4:5], s[4:5], s[8:9]")
    e("s_cselect_b64 s[6:7], s[6:7], s[10:11]")
    e("s_add_u32 s4, s4, s18")
    e("s_addc_u32 s5, s5, 0")
    e("s_add_u32 s6, s6, s18")
    e("s_addc_u32 s7, s7, 0")
    QP = 160
    e("v_add_u32 v8, 0x10000, v3")
    e("v_add_u32 v9, 0x20000, v3")
    e("v_add_u32 v10, 0x30000, v3")
    e(f"global_load_dwordx2 {vr(QP,2)}, v3, s[12:13]")
    e(f"global_load_dwordx2 {vr(QP+2,2)}, v8, s[12:13]")
    e(f"global_load_dwordx2 {vr(QP+4,2)}, v9, s[12:13]")
    e(f"global_load_dwordx2 {vr(QP+6,2)}, v10, s[12:13]")
    KF = 32
    VF = 96
    e("v_add_u32 v8, 4096, v5")
    e("v_add_u32 v9, 8192, v5")
    e("v_add_u32 v10, 12288, v5")
    koff = [5, 8, 9, 10]
    for t in range(4):
        for s in range(4):
            e(f"global_load_dwordx4 {vr(KF+16*t+4*s,4)}, {vr(koff[t])}, s[4:5] offset:{s*64} nt")
    e("v_add_u32 v11, 4096, v7")
    e("v_add_u32 v12, 8192, v7")
    e("v_add_u32 v13, 12288, v7")
    voff = [7, 11, 12, 13]
    for u in range(16):
        e(f"global_load_dwordx4 {vr(VF+4*u,4)}, {vr(voff[u//4])}, s[6:7] offset:{(u%4)*1024} nt")
    e("s_waitcnt vmcnt(32)")
    e(f"v_pk_add_f32 {vr(QP,2)}, {vr(QP,2)}, {vr(QP+2,2)}")
    e(f"v_pk_add_f32 {vr(QP+4,2)}, {vr(QP+4,2)}, {vr(QP+6,2)}")
    e(f"v_pk_add_f32 {vr(QP,2)}, {vr(QP,2)}, {vr(QP+4,2)}")
    e(f"v_cvt_pk_bf16_f32 {vr(QP)}, {vr(QP)}, {vr(QP+1)}")
    e("v_lshlrev_b32 v8, 2, v0")
    e(f"ds_write_b32 v8, {vr(QP)}")
    e("s_waitcnt lgkmcnt(0)")
    e("s_barrier")
    QF = 16
    e("v_and_b32 v8, 3, v2")
    e("v_lshlrev_b32 v8, 8, v8")
    e("v_lshl_add_u32 v8, v6, 4, v8")
    for s in range(4):
        e(f"ds_read_b128 {vr(QF+4*s,4)}, v8 offset:{s*64}")
    D = 160
    for r in range(16):
        e(f"v_mov_b32 {vr(D+r)}, 0")
    e("s_waitcnt lgkmcnt(0)")
    for t in range(4):
        e(f"s_waitcnt vmcnt({28-4*t})")
        for s in range(4):
            e(f"v_mfma_f32_16x16x32_bf16 {vr(D+4*t,4)}, {vr(QF+4*s,4)}, {vr(KF+16*t+4*s,4)}, {vr(D+4*t,4)}")
    e("s_mov_b32 s22, 0xffff0000")
    e("s_mov_b32 s23, 0")
    e("s_mov_b32 s24, 0")
    e("s_mov_b32 s25, 0x0000ffff")
    e("s_mov_b32 s26, 0")
    e("s_mov_b32 s27, 0xffff0000")
    e("s_nop 7")
    e("s_nop 3")
    S = 176
    for i in range(4):
        e(f"v_cndmask_b32 {vr(S+i)}, {vr(D+i)}, {vr(D+4+i)}, s[22:23]")
    for i in range(4):
        e(f"v_cndmask_b32 {vr(S+i)}, {vr(S+i)}, {vr(D+8+i)}, s[24:25]")
    for i in range(4):
        e(f"v_cndmask_b32 {vr(S+i)}, {vr(S+i)}, {vr(D+12+i)}, s[26:27]")
    e("s_mov_b32 s28, 0x3e0293ee")
    for i in range(4):
        e(f"v_mul_f32 {vr(S+i)}, s28, {vr(S+i)}")
    M = 180
    for i in range(4):
        e(f"v_mov_b32 {vr(M+i)}, {vr(S+i)}")
    for st in DPP_STEPS:
        e("s_nop 1")
        for i in range(4):
            dpp_max(M+i, M+i, st)
    e("s_nop 1")
    for i in range(4):
        e(f"v_readlane_b32 s{32+4*i}, {vr(M+i)}, 0")
        e(f"v_readlane_b32 s{33+4*i}, {vr(M+i)}, 16")
        e(f"v_readlane_b32 s{34+4*i}, {vr(M+i)}, 32")
        e(f"v_readlane_b32 s{35+4*i}, {vr(M+i)}, 48")
    e("s_nop 1")
    for i in range(4):
        e(f"v_mov_b32 {vr(M+i)}, s{32+4*i}")
    for k in range(1, 4):
        for i in range(4):
            e(f"v_max_f32 {vr(M+i)}, s{32+4*i+k}, {vr(M+i)}")
    P = 184
    for i in range(4):
        e(f"v_sub_f32 {vr(P+i)}, {vr(S+i)}, {vr(M+i)}")
    for i in range(4):
        e(f"v_exp_f32 {vr(P+i)}, {vr(P+i)}")
    e("v_lshlrev_b32 v8, 10, v1")
    e("v_lshl_add_u32 v9, v2, 4, v8")
    e("s_nop 0")
    e(f"ds_write_b128 v9, {vr(P,4)} offset:1024")
    SUM = 188
    for i in range(4):
        e(f"v_mov_b32 {vr(SUM+i)}, {vr(P+i)}")
    for st in DPP_STEPS:
        e("s_nop 1")
        for i in range(4):
            dpp_add(SUM+i, SUM+i, st)
    e("s_nop 1")
    for i in range(4):
        e(f"v_readlane_b32 s{32+4*i}, {vr(SUM+i)}, 0")
        e(f"v_readlane_b32 s{33+4*i}, {vr(SUM+i)}, 16")
        e(f"v_readlane_b32 s{34+4*i}, {vr(SUM+i)}, 32")
        e(f"v_readlane_b32 s{35+4*i}, {vr(SUM+i)}, 48")
    e("s_nop 1")
    for i in range(4):
        e(f"v_mov_b32 {vr(SUM+i)}, s{32+4*i}")
    for k in range(1, 4):
        for i in range(4):
            e(f"v_add_f32 {vr(SUM+i)}, s{32+4*i+k}, {vr(SUM+i)}")
    e("v_lshl_add_u32 v9, v6, 4, v8")
    e("s_waitcnt lgkmcnt(0)")
    PQ = KF
    for u in range(16):
        e(f"ds_read_b128 {vr(PQ+4*u,4)}, v9 offset:{1024+u*64}")
    ACC = 192
    for r in range(32):
        e(f"v_mov_b32 {vr(ACC+r)}, 0")
    XF = 224
    for u in range(16):
        e(f"s_waitcnt vmcnt({15-u}) lgkmcnt({15-u})")
        unpack8(XF, VF+4*u)
        for h in range(4):
            for k in range(4):
                pk_fma_bcast(ACC+8*h+2*k, XF+2*k, PQ+4*u+h)
    e("v_lshlrev_b32 v8, 5, v1")
    e(f"ds_write_b128 v8, {vr(M,4)} offset:5120")
    e(f"ds_write_b128 v8, {vr(SUM,4)} offset:5136")
    e("s_waitcnt lgkmcnt(0)")
    e("s_barrier")
    AM = 32
    e("v_mov_b32 v9, 0")
    for w in range(4):
        e(f"ds_read_b128 {vr(AM+8*w,4)}, v9 offset:{5120+32*w}")
        e(f"ds_read_b128 {vr(AM+8*w+4,4)}, v9 offset:{5136+32*w}")
    e("s_waitcnt lgkmcnt(0)")
    GM = 64
    for i in range(4):
        e(f"v_max_f32 {vr(GM+i)}, {vr(AM+i)}, {vr(AM+8+i)}")
        e(f"v_max3_f32 {vr(GM+i)}, {vr(GM+i)}, {vr(AM+16+i)}, {vr(AM+24+i)}")
    GL = 68
    F = 72
    for i in range(4):
        e(f"v_sub_f32 {vr(F+i)}, {vr(M+i)}, {vr(GM+i)}")
    for i in range(4):
        e(f"v_exp_f32 {vr(F+i)}, {vr(F+i)}")
    for w in range(4):
        for i in range(4):
            e(f"v_sub_f32 {vr(AM+8*w+i)}, {vr(AM+8*w+i)}, {vr(GM+i)}")
        for i in range(4):
            e(f"v_exp_f32 {vr(AM+8*w+i)}, {vr(AM+8*w+i)}")
    e("s_nop 0")
    for i in range(4):
        e(f"v_mul_f32 {vr(GL+i)}, {vr(AM+i)}, {vr(AM+4+i)}")
    for w in range(1, 4):
        for i in range(4):
            e(f"v_fmac_f32 {vr(GL+i)}, {vr(AM+8*w+i)}, {vr(AM+8*w+4+i)}")
    for h in range(4):
        for k in range(4):
            e(f"v_pk_mul_f32 {vr(ACC+8*h+2*k,2)}, {vr(ACC+8*h+2*k,2)}, {vr(F+(h//2)*2,2)} " +
              ("op_sel:[0,0] op_sel_hi:[1,0]" if h % 2 == 0 else "op_sel:[0,1] op_sel_hi:[1,1]"))
    e("v_lshrrev_b32 v8, 4, v0")
    e("v_lshlrev_b32 v8, 11, v8")
    e("v_and_b32 v9, 15, v0")
    e("v_lshl_add_u32 v8, v9, 5, v8")
    for h in range(4):
        e(f"ds_write_b128 v8, {vr(ACC+8*h,4)} offset:{8192+h*512}")
        e(f"ds_write_b128 v8, {vr(ACC+8*h+4,4)} offset:{8192+h*512+16}")
    e("s_waitcnt lgkmcnt(0)")
    e("s_barrier")
    e("v_lshlrev_b32 v8, 3, v0")
    T = 96
    for r in range(16):
        e(f"ds_read_b64 {vr(T+2*r,2)}, v8 offset:{8192+r*2048}")
    for r in range(1, 16):
        e(f"s_waitcnt lgkmcnt({15-r})")
        e(f"v_pk_add_f32 {vr(T,2)}, {vr(T,2)}, {vr(T+2*r,2)}")
    e("s_lshl_b32 s19, s14, 2")
    e("s_add_u32 s19, s19, s15")
    e("s_lshl_b32 s19, s19, 5")
    e("s_lshl_b32 s20, s16, 2")
    e("s_add_u32 s19, s19, s20")
    e("s_lshl_b32 s21, s19, 12")
    e("s_lshl_b32 s20, s17, 9")
    e("s_add_u32 s21, s21, s20")
    e("s_add_u32 s21, s21, %d" % WS_OPART)
    e("v_lshrrev_b32 v8, 6, v0")
    e("v_lshlrev_b32 v8, 12, v8")
    e("v_and_b32 v9, 63, v0")
    e("v_lshlrev_b32 v9, 3, v9")
    e("v_add3_u32 v8, v8, v9, s21")
    e(f"global_store_dwordx2 v8, {vr(T,2)}, s[12:13]")
    e("s_lshl_b32 s21, s19, 6")
    e("s_lshl_b32 s20, s17, 3")
    e("s_add_u32 s21, s21, s20")
    e("s_add_u32 s21, s21, %d" % WS_ML)
    e("v_cmp_eq_u32 vcc, 1, v0")
    e("s_nop 1")
    e(f"v_cndmask_b32 v10, {vr(GM)}, {vr(GM+1)}, vcc")
    e(f"v_cndmask_b32 v11, {vr(GL)}, {vr(GL+1)}, vcc")
    e("v_cmp_eq_u32 vcc, 2, v0")
    e("s_nop 1")
    e(f"v_cndmask_b32 v10, v10, {vr(GM+2)}, vcc")
    e(f"v_cndmask_b32 v11, v11, {vr(GL+2)}, vcc")
    e("v_cmp_eq_u32 vcc, 3, v0")
    e("s_nop 1")
    e(f"v_cndmask_b32 v10, v10, {vr(GM+3)}, vcc")
    e(f"v_cndmask_b32 v11, v11, {vr(GL+3)}, vcc")
    e("v_lshlrev_b32 v8, 6, v0")
    e("v_add_u32 v8, s21, v8")
    e("v_cmp_gt_u32 vcc, 4, v0")
    e("s_and_saveexec_b64 s[30:31], vcc")
    e("s_cbranch_execz L_a_end")
    e("global_store_dwordx2 v8, v[10:11], s[12:13]")
    lab("L_a_end")
    e("s_endpgm")
    return kd(name, 232, 64)


def gen_oproj():
    name = "oproj_kernel"
    L.append(f".globl {name}\n.p2align 8\n.type {name},@function")
    lab(name)
    e("s_cmp_ge_u32 s2, 256")
    e("s_cbranch_scc1 L_o_end")
    e("s_load_dwordx2 s[4:5], s[0:1], 32")
    e("s_load_dwordx2 s[6:7], s[0:1], 72")
    e("s_load_dwordx2 s[8:9], s[0:1], 80")
    e("s_load_dwordx2 s[10:11], s[0:1], 88")
    e("s_load_dwordx2 s[12:13], s[0:1], 96")
    e("s_lshr_b32 s14, s2, 7")
    e("s_lshr_b32 s15, s2, 3")
    e("s_and_b32 s15, s15, 15")
    e("s_and_b32 s16, s2, 7")
    e("v_and_b32 v1, 7, v0")
    e("v_lshrrev_b32 v2, 3, v0")
    e("s_lshl_b32 s17, s15, 8")
    e("v_lshl_add_u32 v3, v2, 3, s17")
    e("v_lshlrev_b32 v3, 10, v3")
    e("s_lshl_b32 s18, s16, 7")
    e("v_lshlrev_b32 v4, 4, v1")
    e("v_add3_u32 v3, v3, s18, v4")
    e("v_add_u32 v4, 4096, v3")
    e("s_waitcnt lgkmcnt(0)")
    e("s_cmp_eq_u32 s14, 0")
    e("s_cselect_b64 s[4:5], s[4:5], s[6:7]")
    e("v_lshrrev_b32 v5, 6, v0")
    e("v_and_b32 v6, 63, v0")
    e("v_lshrrev_b32 v7, 5, v6")
    e("s_lshl_b32 s19, s14, 2")
    e("v_add_u32 v8, s19, v5")
    e("v_lshlrev_b32 v8, 5, v8")
    e("s_lshl_b32 s20, s15, 1")
    e("v_add3_u32 v8, v8, s20, v7")
    e("v_lshlrev_b32 v9, 6, v8")
    e("v_add_u32 v9, %d, v9" % WS_ML)
    e("v_lshlrev_b32 v10, 12, v8")
    e("v_and_b32 v11, 31, v6")
    e("v_lshl_add_u32 v10, v11, 4, v10")
    e("v_add_u32 v10, %d, v10" % WS_OPART)
    ML = 16
    for k in range(4):
        e(f"global_load_dwordx4 {vr(ML+4*k,4)}, v9, s[12:13] offset:{16*k}")
    OP = 32
    for sp in range(8):
        e(f"global_load_dwordx4 {vr(OP+4*sp,4)}, v10, s[12:13] offset:{512*sp}")
    W = 64
    for i in range(8):
        e(f"global_load_dwordx4 {vr(W+4*i,4)}, {'v3' if i < 4 else 'v4'}, s[4:5] offset:{(i%4)*1024} nt")
    e("s_waitcnt vmcnt(8)")
    e(f"v_max_f32 v12, {vr(ML)}, {vr(ML+2)}")
    for sp in range(2, 8, 2):
        e(f"v_max3_f32 v12, v12, {vr(ML+2*sp)}, {vr(ML+2*sp+2)}")
    for sp in range(8):
        e(f"v_sub_f32 {vr(ML+2*sp)}, {vr(ML+2*sp)}, v12")
    for sp in range(8):
        e(f"v_exp_f32 {vr(ML+2*sp)}, {vr(ML+2*sp)}")
    e("s_nop 0")
    e(f"v_mul_f32 v13, {vr(ML)}, {vr(ML+1)}")
    for sp in range(1, 8):
        e(f"v_fmac_f32 v13, {vr(ML+2*sp)}, {vr(ML+2*sp+1)}")
    e("v_rcp_f32 v13, v13")
    for k in range(4):
        e(f"v_mul_f32 {vr(OP+k)}, {vr(OP+k)}, {vr(ML)}")
    for sp in range(1, 8):
        for k in range(4):
            e(f"v_fmac_f32 {vr(OP+k)}, {vr(OP+4*sp+k)}, {vr(ML+2*sp)}")
    for k in range(4):
        e(f"v_mul_f32 {vr(OP+k)}, {vr(OP+k)}, v13")
    e(f"v_cvt_pk_bf16_f32 v14, {vr(OP)}, {vr(OP+1)}")
    e(f"v_cvt_pk_bf16_f32 v15, {vr(OP+2)}, {vr(OP+3)}")
    e(f"v_lshlrev_b32 {vr(OP)}, 16, v14")
    e(f"v_and_b32 {vr(OP+1)}, 0xffff0000, v14")
    e(f"v_lshlrev_b32 {vr(OP+2)}, 16, v15")
    e(f"v_and_b32 {vr(OP+3)}, 0xffff0000, v15")
    e("v_lshlrev_b32 v11, 4, v0")
    e(f"ds_write_b128 v11, {vr(OP,4)}")
    e("s_waitcnt lgkmcnt(0)")
    e("s_barrier")
    XS = 96
    e("v_lshlrev_b32 v11, 5, v2")
    for b in range(4):
        e(f"ds_read_b128 {vr(XS+8*b,4)}, v11 offset:{b*1024}")
        e(f"ds_read_b128 {vr(XS+8*b+4,4)}, v11 offset:{b*1024+16}")
    ACC = 128
    for r in range(32):
        e(f"v_mov_b32 {vr(ACC+r)}, 0")
    e("s_waitcnt lgkmcnt(0)")
    WF = 160
    for i in range(8):
        e(f"s_waitcnt vmcnt({7-i})")
        unpack8(WF, W+4*i)
        for b in range(4):
            for k in range(4):
                pk_fma_bcast(ACC+8*b+2*k, WF+2*k, XS+8*b+i)
    e("v_lshlrev_b32 v11, 10, v2")
    e("v_lshl_add_u32 v11, v1, 5, v11")
    for b in range(4):
        e(f"ds_write_b128 v11, {vr(ACC+8*b,4)} offset:{4096+b*256}")
        e(f"ds_write_b128 v11, {vr(ACC+8*b+4,4)} offset:{4096+b*256+16}")
    e("s_waitcnt lgkmcnt(0)")
    e("s_barrier")
    e("v_lshlrev_b32 v11, 2, v0")
    T = 16
    for r in range(32):
        e(f"ds_read_b32 {vr(T+r)}, v11 offset:{4096+r*1024}")
    for r in range(1, 32):
        e(f"s_waitcnt lgkmcnt({min(15,31-r)})")
        e(f"v_add_f32 {vr(T)}, {vr(T)}, {vr(T+r)}")
    e("s_lshl_b32 s19, s14, 4")
    e("s_add_u32 s19, s19, s15")
    e("s_lshl_b32 s19, s19, 13")
    e("s_lshl_b32 s20, s16, 8")
    e("s_add_u32 s19, s19, s20")
    e("s_add_u32 s19, s19, %d" % WS_OUTP)
    e("v_lshlrev_b32 v8, 11, v5")
    e("v_lshl_add_u32 v8, v6, 2, v8")
    e("v_add_u32 v9, s19, v8")
    e(f"global_store_dword v9, {vr(T)}, s[12:13] sc1")
    e("s_waitcnt vmcnt(0)")
    e("s_barrier")
    e("s_lshl_b32 s21, s14, 3")
    e("s_add_u32 s21, s21, s16")
    e("s_lshl_b32 s21, s21, 2")
    e("v_mov_b32 v10, s21")
    e("v_mov_b32 v11, 1")
    e("v_cmp_eq_u32 vcc, 0, v0")
    e("s_and_saveexec_b64 s[30:31], vcc")
    e("global_atomic_add v12, v10, v11, s[10:11] sc0 sc1")
    e("v_mov_b32 v13, 0")
    e("s_waitcnt vmcnt(0)")
    e("ds_write_b32 v13, v12")
    e("s_mov_b64 exec, s[30:31]")
    e("s_waitcnt lgkmcnt(0)")
    e("s_barrier")
    e("v_mov_b32 v13, 0")
    e("ds_read_b32 v12, v13")
    e("s_waitcnt lgkmcnt(0)")
    e("v_readfirstlane_b32 s22, v12")
    e("s_nop 3")
    e("s_cmp_lg_u32 s22, 15")
    e("s_cbranch_scc1 L_o_end")
    e("s_lshl_b32 s19, s14, 17")
    e("s_add_u32 s19, s19, s20")
    e("s_add_u32 s19, s19, %d" % WS_OUTP)
    e("v_add_u32 v9, s19, v8")
    e("v_add_u32 v10, 0x8000, v9")
    e("v_add_u32 v11, 0x10000, v9")
    e("v_add_u32 v12, 0x18000, v9")
    bases = ["v9", "v10", "v11", "v12"]
    for r in range(16):
        off = (r % 4) * 8192
        if off < 4096:
            e(f"global_load_dword {vr(T+r)}, {bases[r//4]}, s[12:13] offset:{off} sc1")
        else:
            e(f"v_add_u32 v13, {off}, {bases[r//4]}")
            e(f"global_load_dword {vr(T+r)}, v13, s[12:13] sc1")
    for r in range(1, 16):
        e(f"s_waitcnt vmcnt({15-r})")
        e(f"v_add_f32 {vr(T)}, {vr(T)}, {vr(T+r)}")
    e(f"v_cvt_pk_bf16_f32 {vr(T)}, {vr(T)}, {vr(T)}")
    e("s_lshl_b32 s19, s14, 10")
    e("s_lshl_b32 s20, s16, 7")
    e("s_add_u32 s19, s19, s20")
    e("v_lshlrev_b32 v9, 11, v5")
    e("v_lshl_add_u32 v9, v6, 1, v9")
    e("v_add_u32 v9, s19, v9")
    e(f"global_store_short v9, {vr(T)}, s[8:9]")
    lab("L_o_end")
    e("s_endpgm")
    return kd(name, 168, 40)


HEADER = """; @launch kernel=qproj_kernel grid=(256,1,1) block=(256,1,1) lds=32768
; @launch kernel=attn_kernel grid=(512,1,1) block=(256,1,1) lds=40960
; @launch kernel=oproj_kernel grid=(256,1,1) block=(256,1,1) lds=36864
.amdgcn_target "amdgcn-amd-amdhsa--gfx950"
.text
"""


def main():
    kds = []
    kds.append(gen_qproj())
    kds.append(gen_attn())
    kds.append(gen_oproj())
    txt = HEADER + "\n".join(L) + "\n" + '.section .rodata,"a"\n' + "".join(".p2align 6\n" + k for k in kds)
    open(OUT, "w").write(txt)


if __name__ == "__main__":
    main()
```

```python
import sys

OUT = "concat_heads__sliding_block_cached__sliding_block_cached__decode.s"
NAME = "concat_heads__sliding_block_cached__sliding_block_cached__decode_kernel"

WS_QPART = 0
WS_OPART = 1 << 20
WS_ML = 2 << 20
WS_OUTP = 3 << 20

L = []


def e(s):
    L.append("    " + s)


def lab(s):
    L.append(s + ":")


def vr(a, n=1):
    return f"v{a}" if n == 1 else f"v[{a}:{a+n-1}]"


def pk_fma_bcast(acc, w, x):
    if x % 2 == 0:
        e(f"v_pk_fma_f32 {vr(acc,2)}, {vr(w,2)}, {vr(x,2)}, {vr(acc,2)} op_sel:[0,0,0] op_sel_hi:[1,0,1]")
    else:
        e(f"v_pk_fma_f32 {vr(acc,2)}, {vr(w,2)}, {vr(x-1,2)}, {vr(acc,2)} op_sel:[0,1,0] op_sel_hi:[1,1,1]")


def unpack8(dst, src):
    for k in range(4):
        e(f"v_lshlrev_b32 {vr(dst+2*k)}, 16, {vr(src+k)}")
        e(f"v_and_b32 {vr(dst+2*k+1)}, 0xffff0000, {vr(src+k)}")


def dpp_max(dst, src, ctrl):
    e(f"v_max_f32_dpp {vr(dst)}, {vr(src)}, {vr(src)} {ctrl} row_mask:0xf bank_mask:0xf")


def dpp_add(dst, src, ctrl):
    e(f"v_add_f32_dpp {vr(dst)}, {vr(src)}, {vr(src)} {ctrl} row_mask:0xf bank_mask:0xf")


DPP_STEPS = ["quad_perm:[1,0,3,2]", "quad_perm:[2,3,0,1]", "row_half_mirror", "row_mirror"]

KF = 32
VF = 96
WO = 208


def issue_kv_loads():
    e("v_add_u32 v8, 4096, v5")
    e("v_add_u32 v9, 8192, v5")
    e("v_add_u32 v10, 12288, v5")
    koff = [5, 8, 9, 10]
    for t in range(4):
        for s in range(4):
            e(f"global_load_dwordx4 {vr(KF+16*t+4*s,4)}, {vr(koff[t])}, s[4:5] offset:{s*64} nt")
    e("v_add_u32 v11, 4096, v7")
    e("v_add_u32 v12, 8192, v7")
    e("v_add_u32 v13, 12288, v7")
    voff = [7, 11, 12, 13]
    for u in range(16):
        e(f"global_load_dwordx4 {vr(VF+4*u,4)}, {vr(voff[u//4])}, s[6:7] offset:{(u%4)*1024} nt")
    for i in range(4):
        e(f"global_load_dwordx4 {vr(WO+4*i,4)}, v14, s[36:37] offset:{i*1024} nt")


def poll(label, voff, target):
    lab(label)
    e(f"global_load_dword v15, {voff}, s[40:41] sc1")
    e("s_waitcnt vmcnt(0)")
    e("v_readfirstlane_b32 s30, v15")
    e("s_nop 3")
    e(f"s_cmp_ge_u32 s30, {target}")
    e(f"s_cbranch_scc1 {label}_done")
    e("s_sleep 1")
    e(f"s_branch {label}")
    lab(label + "_done")


def gen():
    L.append(f".globl {NAME}\n.p2align 8\n.type {NAME},@function")
    lab(NAME)
    e("s_cmp_ge_u32 s2, 512")
    e("s_cbranch_scc1 L_end")
    e("s_load_dwordx4 s[4:7], s[0:1], 8")
    e("s_load_dwordx4 s[44:47], s[0:1], 48")
    e("s_load_dwordx2 s[8:9], s[0:1], 0")
    e("s_load_dwordx2 s[48:49], s[0:1], 40")
    e("s_load_dwordx4 s[52:55], s[0:1], 24")
    e("s_load_dwordx4 s[56:59], s[0:1], 64")
    e("s_load_dwordx4 s[60:63], s[0:1], 80")
    e("s_load_dwordx2 s[12:13], s[0:1], 96")
    e("s_lshr_b32 s14, s2, 8")
    e("s_lshr_b32 s15, s2, 6")
    e("s_and_b32 s15, s15, 3")
    e("s_lshr_b32 s16, s2, 3")
    e("s_and_b32 s16, s16, 7")
    e("s_and_b32 s17, s2, 7")
    e("s_lshl_b32 s18, s15, 3")
    e("s_add_u32 s18, s18, s16")
    e("s_lshl_b32 s18, s18, 13")
    e("s_lshl_b32 s19, s17, 8")
    e("s_add_u32 s18, s18, s19")
    e("s_add_u32 s18, s18, 6144")
    e("s_lshl_b32 s18, s18, 8")
    e("v_lshrrev_b32 v1, 6, v0")
    e("v_and_b32 v2, 63, v0")
    e("v_lshlrev_b32 v4, 14, v1")
    e("v_and_b32 v5, 15, v2")
    e("v_lshlrev_b32 v5, 8, v5")
    e("v_lshrrev_b32 v6, 4, v2")
    e("v_lshlrev_b32 v7, 4, v6")
    e("v_add3_u32 v5, v5, v7, v4")
    e("v_lshl_add_u32 v7, v2, 4, v4")
    e("s_lshl_b32 s20, s16, 2")
    e("s_add_u32 s20, s20, s15")
    e("s_lshl_b32 s21, s20, 7")
    e("v_lshrrev_b32 v14, 3, v0")
    e("v_lshl_add_u32 v14, v14, 2, s21")
    e("v_lshlrev_b32 v14, 10, v14")
    e("v_and_b32 v15, 7, v0")
    e("v_lshl_add_u32 v14, v15, 4, v14")
    e("s_lshl_b32 s21, s17, 7")
    e("v_add_u32 v14, s21, v14")
    e("v_readfirstlane_b32 s3, v1")
    e("s_waitcnt lgkmcnt(0)")
    e("s_cmp_eq_u32 s14, 0")
    e("s_cselect_b64 s[4:5], s[4:5], s[44:45]")
    e("s_cselect_b64 s[6:7], s[6:7], s[46:47]")
    e("s_cselect_b64 s[8:9], s[8:9], s[48:49]")
    e("s_cselect_b64 s[10:11], s[52:53], s[56:57]")
    e("s_cselect_b64 s[36:37], s[54:55], s[58:59]")
    e("s_mov_b64 s[38:39], s[60:61]")
    e("s_mov_b64 s[40:41], s[62:63]")
    e("s_add_u32 s4, s4, s18")
    e("s_addc_u32 s5, s5, 0")
    e("s_add_u32 s6, s6, s18")
    e("s_addc_u32 s7, s7, 0")
    e("s_cmp_eq_u32 s3, 0")
    e("s_cbranch_scc1 L_ctrl")
    issue_kv_loads()
    e("s_branch L_waitq")

    lab("L_ctrl")
    e("v_and_b32 v16, 7, v2")
    e("v_lshrrev_b32 v17, 3, v2")
    e("s_lshl_b32 s20, s15, 7")
    e("v_lshl_add_u32 v18, v17, 4, s20")
    e("v_lshlrev_b32 v19, 1, v18")
    e("v_lshlrev_b32 v18, 13, v18")
    e("s_lshl_b32 s20, s16, 10")
    e("s_lshl_b32 s21, s17, 7")
    e("s_add_u32 s20, s20, s21")
    e("v_lshlrev_b32 v20, 4, v16")
    e("v_add3_u32 v18, v18, s20, v20")
    QW = 32
    for i in range(16):
        if i:
            e("v_add_u32 v18, 8192, v18")
        e(f"global_load_dwordx4 {vr(QW+4*i,4)}, v18, s[10:11] nt")
    QX = 96
    for b in range(4):
        e(f"global_load_dwordx4 {vr(QX+8*b,4)}, v19, s[8:9] offset:{b*1024}")
        e(f"global_load_dwordx4 {vr(QX+8*b+4,4)}, v19, s[8:9] offset:{b*1024+16}")
    XS = 128
    ACC = 192
    for r in range(32):
        e(f"v_mov_b32 {vr(ACC+r)}, 0")
    e("s_waitcnt vmcnt(0)")
    for b in range(4):
        unpack8(XS+16*b, QX+8*b)
        unpack8(XS+16*b+8, QX+8*b+4)
    WF = 224
    for i in range(16):
        unpack8(WF, QW+4*i)
        for b in range(4):
            for k in range(4):
                pk_fma_bcast(ACC+8*b+2*k, WF+2*k, XS+16*b+i)
    e("v_lshlrev_b32 v20, 10, v17")
    e("v_lshl_add_u32 v20, v16, 5, v20")
    for b in range(4):
        e(f"ds_write_b128 v20, {vr(ACC+8*b,4)} offset:{16384+b*256}")
        e(f"ds_write_b128 v20, {vr(ACC+8*b+4,4)} offset:{16384+b*256+16}")
    e("v_lshlrev_b32 v20, 4, v2")
    e("s_waitcnt lgkmcnt(0)")
    T = 32
    for r in range(8):
        e(f"ds_read_b128 {vr(T+4*r,4)}, v20 offset:{16384+r*1024}")
    for r in range(1, 8):
        e(f"s_waitcnt lgkmcnt({7-r})")
        e(f"v_pk_add_f32 {vr(T,2)}, {vr(T,2)}, {vr(T+4*r,2)}")
        e(f"v_pk_add_f32 {vr(T+2,2)}, {vr(T+2,2)}, {vr(T+4*r+2,2)}")
    e("s_lshl_b32 s20, s14, 3")
    e("s_add_u32 s20, s20, s16")
    e("s_lshl_b32 s20, s20, 2")
    e("s_add_u32 s20, s20, s15")
    e("s_lshl_b32 s20, s20, 13")
    e("s_lshl_b32 s21, s17, 8")
    e("s_add_u32 s20, s20, s21")
    e("v_lshlrev_b32 v20, 11, v6")
    e("v_and_b32 v21, 15, v2")
    e("v_lshl_add_u32 v20, v21, 4, v20")
    e("v_add_u32 v20, s20, v20")
    e(f"global_store_dwordx4 v20, {vr(T,4)}, s[12:13] sc1")
    e("s_lshl_b32 s21, s14, 3")
    e("s_add_u32 s21, s21, s16")
    e("s_lshl_b32 s21, s21, 2")
    e("v_mov_b32 v21, s21")
    e("v_mov_b32 v22, 1")
    e("s_waitcnt vmcnt(0)")
    e("v_cmp_eq_u32 vcc, 0, v2")
    e("s_and_saveexec_b64 s[30:31], vcc")
    e("global_atomic_add v21, v22, s[40:41] sc1")
    e("s_mov_b64 exec, s[30:31]")
    poll("L_poll1", "v21", 32)
    e("s_lshl_b32 s20, s14, 3")
    e("s_add_u32 s20, s20, s16")
    e("s_lshl_b32 s20, s20, 15")
    e("s_lshl_b32 s21, s15, 11")
    e("s_add_u32 s20, s20, s21")
    e("v_lshlrev_b32 v20, 5, v2")
    e("v_add_u32 v20, s20, v20")
    e("v_add_u32 v21, 0x4000, v20")
    for rg in range(4):
        base = "v20" if rg < 2 else "v21"
        off = (rg % 2) * 8192
        if off:
            e(f"v_add_u32 v22, {off}, {base}")
            base = "v22"
        e(f"global_load_dwordx4 {vr(T+8*rg,4)}, {base}, s[12:13] sc1")
        e(f"global_load_dwordx4 {vr(T+8*rg+4,4)}, {base}, s[12:13] offset:16 sc1")
    e("s_waitcnt vmcnt(0)")
    for k in range(4):
        e(f"v_pk_add_f32 {vr(T+2*k,2)}, {vr(T+2*k,2)}, {vr(T+8+2*k,2)}")
        e(f"v_pk_add_f32 {vr(T+16+2*k,2)}, {vr(T+16+2*k,2)}, {vr(T+24+2*k,2)}")
    for k in range(4):
        e(f"v_pk_add_f32 {vr(T+2*k,2)}, {vr(T+2*k,2)}, {vr(T+16+2*k,2)}")
    for k in range(4):
        e(f"v_cvt_pk_bf16_f32 {vr(T+32+k)}, {vr(T+2*k)}, {vr(T+2*k+1)}")
    e("v_lshlrev_b32 v20, 4, v2")
    e(f"ds_write_b128 v20, {vr(T+32,4)}")
    issue_kv_loads()

    lab("L_waitq")
    e("s_waitcnt lgkmcnt(0)")
    e("s_barrier")
    QF = 16
    e("v_and_b32 v8, 3, v2")
    e("v_lshlrev_b32 v8, 8, v8")
    e("v_lshl_add_u32 v8, v6, 4, v8")
    for s in range(4):
        e(f"ds_read_b128 {vr(QF+4*s,4)}, v8 offset:{s*64}")
    D = 160
    for r in range(16):
        e(f"v_mov_b32 {vr(D+r)}, 0")
    e("s_waitcnt lgkmcnt(0)")
    for t in range(4):
        e(f"s_waitcnt vmcnt({32-4*t})")
        for s in range(4):
            e(f"v_mfma_f32_16x16x32_bf16 {vr(D+4*t,4)}, {vr(QF+4*s,4)}, {vr(KF+16*t+4*s,4)}, {vr(D+4*t,4)}")
    e("s_mov_b32 s22, 0xffff0000")
    e("s_mov_b32 s23, 0")
    e("s_mov_b32 s24, 0")
    e("s_mov_b32 s25, 0x0000ffff")
    e("s_mov_b32 s26, 0")
    e("s_mov_b32 s27, 0xffff0000")
    e("s_nop 7")
    e("s_nop 3")
    S = 176
    for i in range(4):
        e(f"v_cndmask_b32 {vr(S+i)}, {vr(D+i)}, {vr(D+4+i)}, s[22:23]")
    for i in range(4):
        e(f"v_cndmask_b32 {vr(S+i)}, {vr(S+i)}, {vr(D+8+i)}, s[24:25]")
    for i in range(4):
        e(f"v_cndmask_b32 {vr(S+i)}, {vr(S+i)}, {vr(D+12+i)}, s[26:27]")
    e("s_mov_b32 s28, 0x3e0293ee")
    for i in range(4):
        e(f"v_mul_f32 {vr(S+i)}, s28, {vr(S+i)}")
    M = 180
    for i in range(4):
        e(f"v_mov_b32 {vr(M+i)}, {vr(S+i)}")
    for st in DPP_STEPS:
        e("s_nop 1")
        for i in range(4):
            dpp_max(M+i, M+i, st)
    e("s_nop 1")
    for i in range(4):
        for k in range(4):
            e(f"v_readlane_b32 s{44+4*i+k}, {vr(M+i)}, {16*k}")
    e("s_nop 1")
    for i in range(4):
        e(f"v_mov_b32 {vr(M+i)}, s{44+4*i}")
    for k in range(1, 4):
        for i in range(4):
            e(f"v_max_f32 {vr(M+i)}, s{44+4*i+k}, {vr(M+i)}")
    P = 184
    for i in range(4):
        e(f"v_sub_f32 {vr(P+i)}, {vr(S+i)}, {vr(M+i)}")
    for i in range(4):
        e(f"v_exp_f32 {vr(P+i)}, {vr(P+i)}")
    e("v_lshlrev_b32 v8, 10, v1")
    e("v_lshl_add_u32 v9, v2, 4, v8")
    e("s_nop 0")
    e(f"ds_write_b128 v9, {vr(P,4)} offset:1024")
    SUM = 188
    for i in range(4):
        e(f"v_mov_b32 {vr(SUM+i)}, {vr(P+i)}")
    for st in DPP_STEPS:
        e("s_nop 1")
        for i in range(4):
            dpp_add(SUM+i, SUM+i, st)
    e("s_nop 1")
    for i in range(4):
        for k in range(4):
            e(f"v_readlane_b32 s{44+4*i+k}, {vr(SUM+i)}, {16*k}")
    e("s_nop 1")
    for i in range(4):
        e(f"v_mov_b32 {vr(SUM+i)}, s{44+4*i}")
    for k in range(1, 4):
        for i in range(4):
            e(f"v_add_f32 {vr(SUM+i)}, s{44+4*i+k}, {vr(SUM+i)}")
    e("v_lshl_add_u32 v9, v6, 4, v8")
    e("s_waitcnt lgkmcnt(0)")
    PQ = KF
    for u in range(16):
        e(f"ds_read_b128 {vr(PQ+4*u,4)}, v9 offset:{1024+u*64}")
    ACC = 192 - 16
    ACC = 224
    for r in range(32):
        e(f"v_mov_b32 {vr(ACC+r)}, 0")
    XF = 160
    for u in range(16):
        e(f"s_waitcnt vmcnt({19-u}) lgkmcnt({15-u})")
        unpack8(XF, VF+4*u)
        for h in range(4):
            for k in range(4):
                pk_fma_bcast(ACC+8*h+2*k, XF+2*k, PQ+4*u+h)
    e("v_lshlrev_b32 v8, 5, v1")
    e(f"ds_write_b128 v8, {vr(M,4)} offset:5120")
    e(f"ds_write_b128 v8, {vr(SUM,4)} offset:5136")
    e("s_waitcnt lgkmcnt(0)")
    e("s_barrier")
    AM = 32
    e("v_mov_b32 v9, 0")
    for w in range(4):
        e(f"ds_read_b128 {vr(AM+8*w,4)}, v9 offset:{5120+32*w}")
        e(f"ds_read_b128 {vr(AM+8*w+4,4)}, v9 offset:{5136+32*w}")
    e("s_waitcnt lgkmcnt(0)")
    GM = 64
    for i in range(4):
        e(f"v_max_f32 {vr(GM+i)}, {vr(AM+i)}, {vr(AM+8+i)}")
        e(f"v_max3_f32 {vr(GM+i)}, {vr(GM+i)}, {vr(AM+16+i)}, {vr(AM+24+i)}")
    GL = 68
    F = 72
    for i in range(4):
        e(f"v_sub_f32 {vr(F+i)}, {vr(M+i)}, {vr(GM+i)}")
    for i in range(4):
        e(f"v_exp_f32 {vr(F+i)}, {vr(F+i)}")
    for w in range(4):
        for i in range(4):
            e(f"v_sub_f32 {vr(AM+8*w+i)}, {vr(AM+8*w+i)}, {vr(GM+i)}")
        for i in range(4):
            e(f"v_exp_f32 {vr(AM+8*w+i)}, {vr(AM+8*w+i)}")
    e("s_nop 0")
    for i in range(4):
        e(f"v_mul_f32 {vr(GL+i)}, {vr(AM+i)}, {vr(AM+4+i)}")
    for w in range(1, 4):
        for i in range(4):
            e(f"v_fmac_f32 {vr(GL+i)}, {vr(AM+8*w+i)}, {vr(AM+8*w+4+i)}")
    for h in range(4):
        for k in range(4):
            e(f"v_pk_mul_f32 {vr(ACC+8*h+2*k,2)}, {vr(ACC+8*h+2*k,2)}, {vr(F+(h//2)*2,2)} " +
              ("op_sel:[0,0] op_sel_hi:[1,0]" if h % 2 == 0 else "op_sel:[0,1] op_sel_hi:[1,1]"))
    e("v_lshrrev_b32 v8, 4, v0")
    e("v_lshlrev_b32 v8, 11, v8")
    e("v_and_b32 v9, 15, v0")
    e("v_lshl_add_u32 v8, v9, 5, v8")
    for h in range(4):
        e(f"ds_write_b128 v8, {vr(ACC+8*h,4)} offset:{8192+h*512}")
        e(f"ds_write_b128 v8, {vr(ACC+8*h+4,4)} offset:{8192+h*512+16}")
    e("s_waitcnt lgkmcnt(0)")
    e("s_barrier")
    e("v_lshlrev_b32 v8, 3, v0")
    T = 96
    for r in range(16):
        e(f"ds_read_b64 {vr(T+2*r,2)}, v8 offset:{8192+r*2048}")
    for r in range(1, 16):
        e(f"s_waitcnt lgkmcnt({15-r})")
        e(f"v_pk_add_f32 {vr(T,2)}, {vr(T,2)}, {vr(T+2*r,2)}")
    e("s_lshl_b32 s19, s14, 2")
    e("s_add_u32 s19, s19, s15")
    e("s_lshl_b32 s19, s19, 5")
    e("s_lshl_b32 s20, s16, 2")
    e("s_add_u32 s19, s19, s20")
    e("s_lshl_b32 s21, s19, 12")
    e("s_lshl_b32 s20, s17, 9")
    e("s_add_u32 s21, s21, s20")
    e("s_add_u32 s21, s21, %d" % WS_OPART)
    e("v_lshrrev_b32 v8, 6, v0")
    e("v_lshlrev_b32 v8, 12, v8")
    e("v_and_b32 v9, 63, v0")
    e("v_lshlrev_b32 v9, 3, v9")
    e("v_add3_u32 v8, v8, v9, s21")
    e(f"global_store_dwordx2 v8, {vr(T,2)}, s[12:13] sc1")
    e("s_lshl_b32 s21, s19, 6")
    e("s_lshl_b32 s20, s17, 3")
    e("s_add_u32 s21, s21, s20")
    e("s_add_u32 s21, s21, %d" % WS_ML)
    e("v_cmp_eq_u32 vcc, 1, v0")
    e("s_nop 1")
    e(f"v_cndmask_b32 v10, {vr(GM)}, {vr(GM+1)}, vcc")
    e(f"v_cndmask_b32 v11, {vr(GL)}, {vr(GL+1)}, vcc")
    e("v_cmp_eq_u32 vcc, 2, v0")
    e("s_nop 1")
    e(f"v_cndmask_b32 v10, v10, {vr(GM+2)}, vcc")
    e(f"v_cndmask_b32 v11, v11, {vr(GL+2)}, vcc")
    e("v_cmp_eq_u32 vcc, 3, v0")
    e("s_nop 1")
    e(f"v_cndmask_b32 v10, v10, {vr(GM+3)}, vcc")
    e(f"v_cndmask_b32 v11, v11, {vr(GL+3)}, vcc")
    e("v_lshlrev_b32 v8, 6, v0")
    e("v_add_u32 v8, s21, v8")
    e("v_cmp_gt_u32 vcc, 4, v0")
    e("s_and_saveexec_b64 s[30:31], vcc")
    e("global_store_dwordx2 v8, v[10:11], s[12:13] sc1")
    e("s_mov_b64 exec, s[30:31]")
    e("s_waitcnt vmcnt(0)")
    e("s_barrier")
    e("s_cmp_eq_u32 s3, 0")
    e("s_cbranch_scc0 L_wait2")
    e("s_lshl_b32 s21, s14, 3")
    e("s_add_u32 s21, s21, s16")
    e("s_lshl_b32 s21, s21, 2")
    e("s_add_u32 s21, s21, 64")
    e("v_mov_b32 v21, s21")
    e("v_mov_b32 v22, 1")
    e("v_cmp_eq_u32 vcc, 0, v2")
    e("s_and_saveexec_b64 s[30:31], vcc")
    e("global_atomic_add v21, v22, s[40:41] sc1")
    e("s_mov_b64 exec, s[30:31]")
    poll("L_poll2", "v21", 32)
    lab("L_wait2")
    e("s_barrier")
    e("s_lshl_b32 s19, s14, 7")
    e("s_lshl_b32 s20, s16, 2")
    e("s_add_u32 s20, s20, s15")
    e("s_add_u32 s19, s19, s20")
    e("v_lshl_add_u32 v8, v1, 5, s19")
    e("v_lshlrev_b32 v9, 6, v8")
    e("v_add_u32 v9, %d, v9" % WS_ML)
    e("v_lshlrev_b32 v10, 12, v8")
    e("v_lshl_add_u32 v10, v2, 3, v10")
    e("v_add_u32 v10, %d, v10" % WS_OPART)
    ML = 16
    for k in range(4):
        e(f"global_load_dwordx4 {vr(ML+4*k,4)}, v9, s[12:13] offset:{16*k} sc1")
    OP = 32
    for sp in range(8):
        e(f"global_load_dwordx2 {vr(OP+2*sp,2)}, v10, s[12:13] offset:{512*sp} sc1")
    e("s_waitcnt vmcnt(0)")
    e(f"v_max_f32 v12, {vr(ML)}, {vr(ML+2)}")
    for sp in range(2, 8, 2):
        e(f"v_max3_f32 v12, v12, {vr(ML+2*sp)}, {vr(ML+2*sp+2)}")
    for sp in range(8):
        e(f"v_sub_f32 {vr(ML+2*sp)}, {vr(ML+2*sp)}, v12")
    for sp in range(8):
        e(f"v_exp_f32 {vr(ML+2*sp)}, {vr(ML+2*sp)}")
    e("s_nop 0")
    e(f"v_mul_f32 v13, {vr(ML)}, {vr(ML+1)}")
    for sp in range(1, 8):
        e(f"v_fmac_f32 v13, {vr(ML+2*sp)}, {vr(ML+2*sp+1)}")
    e("v_rcp_f32 v13, v13")
    for k in range(2):
        e(f"v_mul_f32 {vr(OP+k)}, {vr(OP+k)}, {vr(ML)}")
    for sp in range(1, 8):
        for k in range(2):
            e(f"v_fmac_f32 {vr(OP+k)}, {vr(OP+2*sp+k)}, {vr(ML+2*sp)}")
    for k in range(2):
        e(f"v_mul_f32 {vr(OP+k)}, {vr(OP+k)}, v13")
    e(f"v_cvt_pk_bf16_f32 v14, {vr(OP)}, {vr(OP+1)}")
    e(f"v_lshlrev_b32 {vr(OP)}, 16, v14")
    e(f"v_and_b32 {vr(OP+1)}, 0xffff0000, v14")
    e("v_lshlrev_b32 v11, 3, v0")
    e(f"ds_write_b64 v11, {vr(OP,2)}")
    e("s_waitcnt lgkmcnt(0)")
    e("s_barrier")
    XS = 48
    e("v_lshrrev_b32 v11, 3, v0")
    e("v_lshlrev_b32 v11, 4, v11")
    for b in range(4):
        e(f"ds_read_b128 {vr(XS+4*b,4)}, v11 offset:{b*512}")
    ACC2 = 64
    for r in range(32):
        e(f"v_mov_b32 {vr(ACC2+r)}, 0")
    e("s_waitcnt lgkmcnt(0)")
    WF = 96
    for i in range(4):
        unpack8(WF, WO+4*i)
        for b in range(4):
            for k in range(4):
                pk_fma_bcast(ACC2+8*b+2*k, WF+2*k, XS+4*b+i)
    e("v_lshrrev_b32 v11, 3, v0")
    e("v_lshlrev_b32 v11, 10, v11")
    e("v_and_b32 v12, 7, v0")
    e("v_lshl_add_u32 v11, v12, 5, v11")
    for b in range(4):
        e(f"ds_write_b128 v11, {vr(ACC2+8*b,4)} offset:{4096+b*256}")
        e(f"ds_write_b128 v11, {vr(ACC2+8*b+4,4)} offset:{4096+b*256+16}")
    e("s_waitcnt lgkmcnt(0)")
    e("s_barrier")
    e("v_lshlrev_b32 v11, 2, v0")
    T = 16
    for r in range(32):
        e(f"ds_read_b32 {vr(T+r)}, v11 offset:{4096+r*1024}")
    for r in range(1, 32):
        e(f"s_waitcnt lgkmcnt({min(15,31-r)})")
        e(f"v_add_f32 {vr(T)}, {vr(T)}, {vr(T+r)}")
    e("s_lshl_b32 s19, s14, 5")
    e("s_add_u32 s19, s19, s20")
    e("s_lshl_b32 s19, s19, 13")
    e("s_lshl_b32 s21, s17, 8")
    e("s_add_u32 s19, s19, s21")
    e("s_add_u32 s19, s19, %d" % WS_OUTP)
    e("v_lshlrev_b32 v8, 11, v1")
    e("v_lshl_add_u32 v8, v2, 2, v8")
    e("v_add_u32 v9, s19, v8")
    e(f"global_store_dword v9, {vr(T)}, s[12:13] sc1")
    e("s_waitcnt vmcnt(0)")
    e("s_barrier")
    e("s_lshl_b32 s21, s14, 3")
    e("s_add_u32 s21, s21, s17")
    e("s_lshl_b32 s21, s21, 2")
    e("s_add_u32 s21, s21, 128")
    e("v_mov_b32 v10, s21")
    e("v_mov_b32 v11, 1")
    e("v_cmp_eq_u32 vcc, 0, v0")
    e("s_and_saveexec_b64 s[30:31], vcc")
    e("global_atomic_add v12, v10, v11, s[40:41] sc0 sc1")
    e("v_mov_b32 v13, 0")
    e("s_waitcnt vmcnt(0)")
    e("ds_write_b32 v13, v12")
    e("s_mov_b64 exec, s[30:31]")
    e("s_waitcnt lgkmcnt(0)")
    e("s_barrier")
    e("v_mov_b32 v13, 0")
    e("ds_read_b32 v12, v13")
    e("s_waitcnt lgkmcnt(0)")
    e("v_readfirstlane_b32 s22, v12")
    e("s_nop 3")
    e("s_cmp_lg_u32 s22, 31")
    e("s_cbranch_scc1 L_end")
    e("s_lshl_b32 s19, s14, 18")
    e("s_lshl_b32 s21, s17, 8")
    e("s_add_u32 s19, s19, s21")
    e("s_add_u32 s19, s19, %d" % WS_OUTP)
    e("v_add_u32 v9, s19, v8")
    for r in range(32):
        e(f"global_load_dword {vr(T+r)}, v9, s[12:13] sc1")
        if r < 31:
            e("v_add_u32 v9, 8192, v9")
    for r in range(1, 32):
        e(f"s_waitcnt vmcnt({31-r})")
        e(f"v_add_f32 {vr(T)}, {vr(T)}, {vr(T+r)}")
    e(f"v_cvt_pk_bf16_f32 {vr(T)}, {vr(T)}, {vr(T)}")
    e("s_lshl_b32 s19, s14, 10")
    e("s_lshl_b32 s21, s17, 7")
    e("s_add_u32 s19, s19, s21")
    e("v_lshlrev_b32 v9, 11, v1")
    e("v_lshl_add_u32 v9, v2, 1, v9")
    e("v_add_u32 v9, s19, v9")
    e(f"global_store_short v9, {vr(T)}, s[38:39]")
    lab("L_end")
    e("s_endpgm")


HEADER = """; @launch grid=(512,1,1) block=(256,1,1) lds=40960
.amdgcn_target "amdgcn-amd-amdhsa--gfx950"
.text
"""

KD = f""".section .rodata,"a"
.p2align 6
.amdhsa_kernel {NAME}
  .amdhsa_next_free_vgpr 256
  .amdhsa_next_free_sgpr 64
  .amdhsa_accum_offset 256
  .amdhsa_group_segment_fixed_size 0
  .amdhsa_kernarg_size 104
  .amdhsa_user_sgpr_count 2
  .amdhsa_user_sgpr_kernarg_segment_ptr 1
  .amdhsa_system_sgpr_workgroup_id_x 1
.end_amdhsa_kernel
"""


def main():
    gen()
    open(OUT, "w").write(HEADER + "\n".join(L) + "\n" + KD)


if __name__ == "__main__":
    main()
```
